```python
import torch

def _softmax(x, axis=-1):
    return torch.softmax(x, dim=axis)
def _gelu(x):
    return torch.nn.functional.gelu(x, approximate="tanh")
def _silu(x):
    return torch.nn.functional.silu(x)
def _sigmoid(x):
    return torch.sigmoid(x)
def _layernorm(x, axis=-1, eps=1e-5):
    m = x.mean(dim=axis, keepdim=True)
    v = x.var(dim=axis, keepdim=True, unbiased=False)
    return (x - m) / torch.sqrt(v + eps)
def _scatter_add(tgt, idx, src, axis=0):
    return tgt.clone().index_add_(axis, idx, src)
def _segment_sum(src, seg, n):
    out = torch.zeros((n,) + src.shape[1:], dtype=src.dtype)
    return out.index_add_(0, seg, src)
def _pad(x, pw):
    flat = tuple(v for pair in reversed(pw) for v in pair)
    return torch.nn.functional.pad(x, flat)

kernel_name = 'concat_heads__gqa_block_cached__mha_block_cached__near_ridge'

def setup_inputs():

    _w = (lambda a: (lambda t: t.to(torch.bfloat16) if t.is_floating_point() else t)(torch.as_tensor(a)))
    def _A_setup():
        B, Sq, D = 8, 96, 640
        Hq, Hkv, Sk, Dh = 32, 32, 512, 192
        assert Hq % Hkv == 0, (Hq, Hkv)
        return {
            "x": _w((lambda *s: torch.randn(*s, dtype=torch.bfloat16) * 0.8)(B, Sq, D)),
            "k_cache": _w((lambda *s: torch.randn(*s, dtype=torch.bfloat16) * 0.8)(B, Hkv, Sk, Dh)),
            "v_cache": _w((lambda *s: torch.randn(*s, dtype=torch.bfloat16) * 0.05)(B, Hkv, Sk, Dh)),
            "wq": _w((lambda *s: torch.randn(*s, dtype=torch.bfloat16) * 0.8)(D, Hq * Dh) * (D ** -0.5)),
            "wo": _w((lambda *s: torch.randn(*s, dtype=torch.bfloat16) * 0.05)(Hq * Dh, D) * ((Hq * Dh) ** -0.5)),
        }
    _A_in = _A_setup()

    def _B_setup():
        B, Sq, D = 8, 96, 640
        H, Sk, Dh = 32, 512, 192
        return {
            "x": _w((lambda *s: torch.randn(*s, dtype=torch.bfloat16) * 0.8)(B, Sq, D)),
            "k_cache": _w((lambda *s: torch.randn(*s, dtype=torch.bfloat16) * 0.8)(B, H, Sk, Dh)),
            "v_cache": _w((lambda *s: torch.randn(*s, dtype=torch.bfloat16) * 0.05)(B, H, Sk, Dh)),
            "wq": _w((lambda *s: torch.randn(*s, dtype=torch.bfloat16) * 0.8)(D, H * Dh) * (D ** -0.5)),
            "wo": _w((lambda *s: torch.randn(*s, dtype=torch.bfloat16) * 0.05)(H * Dh, D) * ((H * Dh) ** -0.5)),
        }
    _B_in = _B_setup()

    return {
        "A_x": _A_in["x"],
        "A_k_cache": _A_in["k_cache"],
        "A_v_cache": _A_in["v_cache"],
        "A_wq": _A_in["wq"],
        "A_wo": _A_in["wo"],
        "B_x": _B_in["x"],
        "B_k_cache": _B_in["k_cache"],
        "B_v_cache": _B_in["v_cache"],
        "B_wq": _B_in["wq"],
        "B_wo": _B_in["wo"],
    }

def reference(A_x, A_k_cache, A_v_cache, A_wq, A_wo, B_x, B_k_cache, B_v_cache, B_wq, B_wo):
    def _A_ref(x, k_cache, v_cache, wq, wo):
        B, Sq, D = x.shape
        Hq, Dh = 32, 192
        Hkv = k_cache.shape[1]
        rep = Hq // Hkv
        q = (lambda x, *d: x.permute(*d))((x @ wq).reshape(B, Sq, Hq, Dh), 0, 2, 1, 3)
        k = (lambda x, n, axis: torch.repeat_interleave(x, n, dim=axis))(k_cache, rep, axis=1)
        v = (lambda x, n, axis: torch.repeat_interleave(x, n, dim=axis))(v_cache, rep, axis=1)
        scores = torch.einsum("bhqd,bhkd->bhqk", q, k) * (Dh ** -0.5)
        p = _softmax(scores, axis=-1)
        o = torch.einsum("bhqk,bhkd->bhqd", p, v)
        return (lambda x, *d: x.permute(*d))(o, 0, 2, 1, 3).reshape(B, Sq, Hq * Dh) @ wo

    def _B_ref(x, k_cache, v_cache, wq, wo):
        B, Sq, D = x.shape
        H, Dh = 32, 192
        q = (lambda x, *d: x.permute(*d))((x @ wq).reshape(B, Sq, H, Dh), 0, 2, 1, 3)
        scores = torch.einsum("bhqd,bhkd->bhqk", q, k_cache) * (Dh ** -0.5)
        p = _softmax(scores, axis=-1)
        o = torch.einsum("bhqk,bhkd->bhqd", p, v_cache)
        return (lambda x, *d: x.permute(*d))(o, 0, 2, 1, 3).reshape(B, Sq, H * Dh) @ wo

    a = _A_ref(A_x, A_k_cache, A_v_cache, A_wq, A_wo)
    b = _B_ref(B_x, B_k_cache, B_v_cache, B_wq, B_wo)
    return torch.concatenate([a, b], axis=-1)
```

```python
import re, heapq

_RNG = re.compile(r"^(-?|abs\()?([vas])\[(\d+):(\d+)\]\)?$")
_ONE = re.compile(r"^(-?|abs\()?([vas])(\d+)\)?$")

def regs_of(tok):
    tok = tok.strip()
    m = _RNG.match(tok)
    if m:
        return [(m.group(2), i) for i in range(int(m.group(3)), int(m.group(4)) + 1)]
    m = _ONE.match(tok)
    if m:
        return [(m.group(2), int(m.group(3)))]
    if tok in ("m0", "vcc", "exec", "scc"):
        return [(tok, 0)]
    return []

TRANS = ("v_exp_f32", "v_log_f32", "v_rcp_f32", "v_rsq_f32", "v_sqrt_f32")
SCC_W = ("s_add_u32", "s_addc_u32", "s_sub_u32", "s_subb_u32", "s_and_b32", "s_or_b32", "s_xor_b32", "s_lshl_b32",
         "s_lshr_b32", "s_add_i32", "s_sub_i32", "s_min_u32", "s_max_u32", "s_and_b64", "s_or_b64", "s_addk_i32",
         "s_bfe_u32", "s_lshl_b64", "s_andn2_b32", "s_lshl1_add_u32", "s_lshl2_add_u32", "s_lshl3_add_u32", "s_lshl4_add_u32")
SCC_R = ("s_addc_u32", "s_subb_u32", "s_cselect_b32", "s_cselect_b64")

class Op:
    __slots__ = ("text", "kind", "rd", "wr", "preds", "done", "idx", "pin", "dl", "t", "succ", "npred", "est",
                 "mord", "cost", "tdone", "cregs", "abregs", "prio_adj", "raw", "gap")
    def __init__(self, text, kind=None, rd=None, wr=None):
        self.text = text
        self.preds = []
        self.done = []
        self.pin = False
        self.prio_adj = 0
        self.cregs = (); self.abregs = ()
        self.raw = False
        self.gap = None
        if kind is not None and rd is not None:
            self.kind, self.rd, self.wr = kind, list(rd), list(wr or [])
        else:
            self.parse()
            if kind is not None: self.kind = kind
        self.cost = {"mfma": 8, "trans": 8, "dma": 8, "vld": 8, "vst": 8, "bar": 8}.get(self.kind, 4)

    def parse(self):
        t = self.text.split(";")[0].strip()
        mn, _, rest = t.partition(" ")
        mn = mn.replace("_e32", "").replace("_e64", "")
        ops = [x.strip() for x in rest.split(",")] if rest.strip() else []
        mods = []
        if ops:
            m = re.search(r"\s(op_sel|op_sel_hi|neg_lo|neg_hi):", rest)
            if m:
                rest2 = rest[:m.start()]
                ops = [x.strip() for x in rest2.split(",")]
            last = ops[-1].split()
            ops[-1] = last[0]; mods = last[1:]
        R = [regs_of(o) for o in ops]
        flat = lambda xs: [r for x in xs for r in x]
        rd, wr = [], []
        if mn.startswith("v_mfma"):
            kind = "mfma"; wr = R[0]; rd = flat(R[1:]); self.cregs = tuple(R[3]); self.abregs = tuple(R[1] + R[2])
        elif mn.startswith("ds_read"):
            kind = "dsr"; wr = R[0]; rd = flat(R[1:])
        elif mn.startswith("ds_write"):
            kind = "dsw"; rd = flat(R)
        elif mn.startswith("buffer_load") or mn.startswith("global_load"):
            if "lds" in mods:
                kind = "dma"; rd = flat(R) + [("m0", 0)]
            else:
                kind = "vld"; wr = R[0]; rd = flat(R[1:])
        elif mn.startswith("buffer_store") or mn.startswith("global_store") or mn.startswith("buffer_atomic"):
            kind = "vst"; rd = flat(R)
        elif mn == "s_barrier":
            kind = "bar"
        elif mn.startswith("s_cmp"):
            kind = "salu"; rd = flat(R); wr = [("scc", 0)]
        elif mn.startswith("s_"):
            kind = "salu"; wr = list(R[0]) if R else []; rd = flat(R[1:])
            if mn in SCC_W: wr = wr + [("scc", 0)]
            if mn in SCC_R: rd = rd + [("scc", 0)]
            if mn in ("s_addk_i32", "s_mulk_i32"): rd = rd + list(R[0])
        elif mn.startswith("v_permlane"):
            kind = "valu"; wr = flat(R); rd = flat(R)
        elif mn.startswith("v_"):
            kind = "trans" if mn in TRANS else "valu"
            wr = list(R[0]); rd = flat(R[1:])
            if mn.startswith("v_fmac"): rd = rd + list(R[0])
            if mn in ("v_add_co_u32", "v_addc_co_u32", "v_sub_co_u32"):
                wr = wr + list(R[1]); rd = flat(R[2:])
        else:
            raise ValueError("cannot parse " + self.text)
        if kind in ("mfma", "dsr", "dsw", "dma", "vld", "vst", "valu", "trans"):
            rd = rd + [("exec", 0)]
        self.kind, self.rd, self.wr = kind, rd, wr

LAT_DSR = 120
LAT_DSW = 120
LAT_VLD = 600

def edge_latency(p, s, typ):
    if typ == "raw":
        if p.kind == "dsr": return LAT_DSR
        if p.kind == "vld": return LAT_VLD
        if p.kind == "mfma":
            if s.kind == "mfma" and tuple(p.wr) == s.cregs and not (set(p.wr) & set(s.abregs)): return 16
            return 48
        if p.kind in ("valu", "trans"):
            if s.kind == "mfma": return p.cost + 8
            if p.kind == "trans": return 12
            if s.text.startswith("v_permlane"): return 12
            return 4
        if p.kind == "salu":
            if s.kind == "dma": return 8
            return 4
        return 4
    if typ == "waw":
        if p.kind == "mfma":
            if s.kind == "mfma": return 16
            return 48
        if p.kind == "dsr": return LAT_DSR
        if p.kind == "vld": return LAT_VLD
        return 4
    if p.kind == "vst": return 16
    return p.cost

class Prog:
    def __init__(self):
        self.ops = []
        self.last_mfma = None
    def add(self, op, pin=False, after=(), done=(), adj=0):
        if isinstance(op, str): op = Op(op)
        op.idx = len(self.ops)
        op.pin = pin
        op.prio_adj = adj
        for a in after:
            if a is None: continue
            if isinstance(a, tuple): op.preds.append(a)
            else: op.preds.append((a, a.cost))
        for d in done:
            op.done.append(d)
            lat = {"dsr": LAT_DSR, "dsw": LAT_DSW, "vld": LAT_VLD}.get(d.kind, d.cost)
            op.preds.append((d, lat))
        if pin and self.last_mfma is not None:
            op.preds.append((self.last_mfma, 8))
        if op.kind == "mfma": self.last_mfma = op
        self.ops.append(op)
        return op
    __call__ = add

    def schedule(self, dma_gap=24, verbose=False):
        ops = self.ops
        lastw, readers = {}, {}
        E = [dict() for _ in ops]
        def edge(p, s, lat):
            if p is s: return
            assert p.idx < s.idx, (p.text, s.text)
            d = E[s.idx]
            if d.get(p.idx, -1) < lat: d[p.idx] = lat
        last_v = last_bar = last_m = last_raw = None
        since_raw = []
        for o in ops:
            for r in o.rd:
                if r in lastw: edge(lastw[r], o, edge_latency(lastw[r], o, "raw"))
            for r in o.wr:
                if r in lastw: edge(lastw[r], o, edge_latency(lastw[r], o, "waw"))
                for q in readers.get(r, ()): edge(q, o, edge_latency(q, o, "war"))
            for r in o.rd: readers.setdefault(r, []).append(o)
            for r in o.wr:
                lastw[r] = o; readers[r] = []
            for p, lat in o.preds: edge(p, o, lat)
            if o.kind in ("dma", "vld", "vst"):
                if last_v is not None: edge(last_v, o, last_v.cost)
                last_v = o
            if o.kind == "bar":
                if last_bar is not None: edge(last_bar, o, 8)
                last_bar = o
            if o.kind == "mfma":
                if last_m is not None: edge(last_m, o, 8)
                last_m = o
            if o.raw:
                for q in since_raw: edge(q, o, q.cost)
                if last_raw is not None: edge(last_raw, o, 4)
                since_raw = []; last_raw = o
            else:
                if last_raw is not None: edge(last_raw, o, 4)
                since_raw.append(o)
        k = 0
        pos = [0] * len(ops)
        for o in ops:
            pos[o.idx] = k
            if o.kind == "mfma": o.mord = k; k += 1
        for o in ops: o.succ = []
        for o in ops:
            for pi, lat in E[o.idx].items(): ops[pi].succ.append((o, lat))
        for o in reversed(ops):
            if o.kind == "mfma":
                o.dl = 16 * o.mord
            else:
                d = 16 * pos[o.idx] + (0 if o.pin else 400)
                for s, lat in o.succ: d = min(d, s.dl - lat)
                o.dl = d
        for o in ops:
            o.npred = len(E[o.idx]); o.est = 0
        ready = [o for o in ops if o.npred == 0]
        mq = [o for o in ops if o.kind == "mfma"]
        mi = 0
        t = 0; mfree = 0; ldsfree = 0; lastdma = -1000
        out = []
        nleft = len(ops)
        ready_nm = [o for o in ready if o.kind != "mfma"]
        stall = 0
        def issue(o):
            nonlocal t, mfree, ldsfree, lastdma, nleft
            o.t = t
            extra = 0
            if o.kind == "mfma": mfree = t + 16
            if o.kind in ("dsr", "dsw"):
                occ = 16 if "b128" in o.text else 8
                if o.kind == "dsw": occ = 48 if "b128" in o.text else 24
                st = max(t, ldsfree); ldsfree = st + occ; extra = st - t
            if o.kind == "dma": lastdma = t
            o.tdone = t + extra + {"dsr": LAT_DSR, "dsw": LAT_DSW, "vld": LAT_VLD}.get(o.kind, 0)
            out.append(o); nleft -= 1
            for s, lat in o.succ:
                l2 = lat + (extra if lat >= 64 else 0)
                if s.est < o.t + l2: s.est = o.t + l2
                s.npred -= 1
                if s.npred == 0 and s.kind != "mfma": ready_nm.append(s)
            t += o.cost
        while nleft:
            m = mq[mi] if mi < len(mq) else None
            tm = None
            if m is not None and m.npred == 0:
                tm = max(m.est, mfree)
                if tm <= t:
                    issue(m); mi += 1; continue
            cands = []
            for o in ready_nm:
                e = o.est
                if o.kind == "dma": e = max(e, lastdma + (o.gap if o.gap is not None else dma_gap))
                if o.kind in ("dsr", "dsw") and ldsfree - t > 96: e = max(e, ldsfree - 96)
                if e <= t: cands.append(o)
            if cands:
                best = min(cands, key=lambda o: (o.dl + o.prio_adj, o.idx))
                if tm is not None and t + best.cost > tm:
                    fit = [o for o in cands if t + o.cost <= tm]
                    if fit:
                        b2 = min(fit, key=lambda o: (o.dl + o.prio_adj, o.idx))
                        best = b2
                ready_nm.remove(best); issue(best); continue
            nxt = []
            if tm is not None: nxt.append(tm)
            for o in ready_nm:
                e = o.est
                if o.kind == "dma": e = max(e, lastdma + (o.gap if o.gap is not None else dma_gap))
                if o.kind in ("dsr", "dsw") and ldsfree - t > 96: e = max(e, ldsfree - 96)
                nxt.append(e)
            assert nxt, "deadlock in scheduler"
            nt = min(nxt)
            assert nt > t
            t = nt
        self.sched = out
        self.model_cycles = t
        return out

    def finalize(self, seq=None, comments=False):
        seq = seq if seq is not None else self.sched
        lines = []
        lg, vm = [], []
        pend = {}
        hist = []
        nwait = nnop = 0
        def emit(text, op=None, states=1):
            lines.append("    " + text)
            hist.append((op, states))
        def need(ops_needed, now):
            nonlocal lg, vm, nwait
            nl = nv = None
            for x in ops_needed:
                if x.kind in ("dsr", "dsw"):
                    if x in lg:
                        n = len(lg) - 1 - lg.index(x); nl = n if nl is None else min(nl, n)
                elif x.kind in ("dma", "vld", "vst"):
                    if x in vm:
                        n = len(vm) - 1 - vm.index(x); nv = n if nv is None else min(nv, n)
            if nl is None and nv is None: return
            parts = []
            if nv is not None:
                nv = min(nv, 63); parts.append(f"vmcnt({nv})")
                gone = vm[:len(vm) - nv]; vm = vm[len(vm) - nv:]
                for g in gone:
                    for r in g.wr:
                        if pend.get(r) is g: del pend[r]
            if nl is not None:
                while nl > 0 and lg[len(lg) - nl].tdone <= now: nl -= 1
                nl = min(nl, 15); parts.append(f"lgkmcnt({nl})")
                gone = lg[:len(lg) - nl]; lg = lg[len(lg) - nl:]
                for g in gone:
                    for r in g.wr:
                        if pend.get(r) is g: del pend[r]
            emit("s_waitcnt " + " ".join(parts)); nwait += 1
        def hazard(o):
            req = 0
            dist = 0
            rd, wr = set(o.rd), set(o.wr)
            isv = o.kind in ("valu", "trans")
            for p, st in reversed(hist):
                if dist >= 12: break
                if p is not None:
                    pw = set(p.wr)
                    n = 0
                    if p.kind == "mfma":
                        if o.kind == "mfma":
                            if pw & set(o.abregs): n = 8
                            elif pw & set(o.cregs) and tuple(p.wr) != o.cregs: n = 6
                            elif pw & wr and tuple(p.wr) != o.cregs: n = 6
                        elif pw & (rd | wr): n = 8
                        if isv and set(p.cregs) & wr: n = max(n, 3)
                    elif p.kind in ("valu", "trans"):
                        vw = {r for r in pw if r[0] in "va"}
                        sw = pw - vw
                        if o.kind == "mfma" and vw & rd: n = 2
                        if o.kind == "mfma" and ("exec", 0) in sw: n = 4
                        if p.kind == "trans" and isv and vw & rd: n = max(n, 1)
                        if o.text.startswith("v_permlane") and vw & rd: n = max(n, 2)
                        if (o.text.startswith("v_readfirstlane") or o.text.startswith("v_readlane")) and vw & rd: n = max(n, 1)
                        if o.kind in ("dma", "vld", "vst") and sw & rd: n = max(n, 5)
                        if isv and sw & rd: n = max(n, 2)
                        if o.kind == "salu" and sw & rd: n = max(n, 1)
                    elif p.kind == "salu":
                        if ("m0", 0) in pw and o.kind == "dma": n = 1
                    elif p.kind == "vst":
                        if ("x4" in p.text or "x3" in p.text) and set(p.rd) & wr: n = 2
                    req = max(req, n - dist)
                dist += st
            return req
        for o in seq:
            now = getattr(o, "t", 0)
            if o.raw:
                nd = list(o.done)
                for r in list(o.rd) + list(o.wr):
                    if r in pend: nd.append(pend[r])
                need(nd, now)
                h = 12 if any(p is not None and p.kind in ("mfma", "valu", "trans", "vst") for p, _ in hist[-10:]) and (o.rd or o.wr) else 0
                h = min(h, max(hazard(o), 0)) if h else 0
                if h > 0:
                    emit(f"s_nop {h-1}", None, h); nnop += 1
                for ln in o.text.split("\n"):
                    s = ln.strip()
                    if not s: continue
                    if s.endswith(":"): lines.append(s)
                    else: emit(s)
                    if s.startswith("s_waitcnt") and not getattr(o, "cond", False):
                        pass
                if "DRAIN_LGKM" in o.text:
                    for g in lg:
                        for r in g.wr:
                            if pend.get(r) is g: del pend[r]
                    lg = []
                if "DRAIN_VM" in o.text:
                    for g in vm:
                        for r in g.wr:
                            if pend.get(r) is g: del pend[r]
                    vm = []
                fake = Op("; blk", kind="valu", rd=[], wr=o.wr)
                hist.append((fake, 0))
                continue
            nd = list(o.done)
            for r in o.rd:
                if r in pend: nd.append(pend[r])
            for r in o.wr:
                if r in pend and not (pend[r].kind == o.kind == "dsr"): nd.append(pend[r])
            need(nd, now)
            h = hazard(o)
            if h > 0:
                emit(f"s_nop {h-1}", None, h); nnop += 1
            emit(o.text + (f"   ; t={o.t}" if comments else ""), o)
            if o.kind in ("dsr", "dsw"):
                lg.append(o)
            if o.kind in ("dma", "vld", "vst"):
                vm.append(o)
                assert len(vm) <= 63, "too many outstanding vmem ops"
            if o.kind in ("dsr", "vld"):
                for r in o.wr: pend[r] = o
        self.stats = dict(n=len(lines), waits=nwait, nops=nnop, model=getattr(self, "model_cycles", None))
        return lines

def raw(text, rd=(), wr=(), cost=4):
    rr = [r for x in rd for r in regs_of(x)]
    ww = [r for x in wr for r in regs_of(x)]
    o = Op(text, kind="valu", rd=rr, wr=ww)
    o.raw = True
    o.cost = cost
    return o
```

```python
import sys, struct
from asmgen import Op, Prog, raw

NAME = "concat_heads__gqa_block_cached__mha_block_cached__near_ridge"
UNIT = 12288
RB = 73728
XB = RB + 2 * UNIT
STATS = RB + 7 * UNIT
LDS_BYTES = 163840
HEADB = 196608
OBLK = 36864
WS_O = 0
WS_P = 32 << 20
WS_T = 96 << 20
CSCALE = (192 ** -0.5) * 1.4426950408889634
def f32bits(x): return struct.unpack("<I", struct.pack("<f", x))[0]

sX, sK, sV, sWq, sWo, sO, sP, sOut = 8, 12, 16, 20, 24, 28, 32, 36
sW, sQH, sKH, sW3K, sC = 48, 49, 50, 51, 52
sBR, sHG, sB, sHH = 53, 54, 55, 56
sT0, sT1, sT2, sT3 = 57, 58, 59, 60
sXoff, sWoff = 61, 62
sHd, sWoo, sOo = 63, 64, 65
sST = 66
sSTAMP = 70
def srd(n): return f"s[{n}:{n+3}]"

vL16 = 1
vKV = [2, 3, 4]; vWd = [5, 6, 7]; vXd = [8, 9, 10]
vKa, vKb = 11, 12
vVo = [13, 14, 15, 16]; vVp = [17, 18, 19, 20]
vW = [21, 22, 23, 24]
vXa, vXb = 25, 26
vPw, vPr, vQw, vQr, vSw, vSr, vOst = 27, 28, 29, 30, 31, 32, 33
vLane, vOd = 34, 35
vM = 36
vPM = 40
vMC = 44
vT = 48
S0 = 64
def Sreg(t, i, kt=0): return S0 + (t * 3 + i) * 8 + 4 * kt
aX, aY, aSUM, aONE, aKV, aW, aB, aPP = 0, 72, 144, 156, 160, 184, 208, 232
def vr(n, k=4): return f"v[{n}:{n+k-1}]"
def ar(n, k=4): return f"a[{n}:{n+k-1}]"
MF = "v_mfma_f32_16x16x32_bf16"

class Tile:
    def __init__(self, name, kind, nunits=1, allowed=None, dma=None, lead=2, fixed_ie=None):
        self.name, self.kind, self.nunits, self.allowed, self.dma = name, kind, nunits, allowed, dma
        self.fu = self.lu = self.ie = self.addr = None
        self.lead, self.fixed_ie = lead, fixed_ie
        self.prod, self.reads = [], []
    def use(self, e):
        self.fu = e if self.fu is None else min(self.fu, e)
        self.lu = e if self.lu is None else max(self.lu, e)

class Kern:
    def __init__(self, cfg):
        self.cfg = cfg
        self.p = Prog()
        self.epochs = []
        self.tiles = []
        self.fixed = []
        self.bar = {}
        self.kvr = 0; self.wr = 0
        self.nstamp = 0
        self.stamp_names = []

    def plan(self):
        occ = {}
        def free(keys, a, b):
            return all(not (x <= b and a <= y) for k in keys for (x, y) in occ.get(k, ()))
        def take(keys, a, b):
            for k in keys: occ.setdefault(k, []).append((a, b))
        for t in self.fixed:
            if t.kind == "stats":
                keys = ["st"]; t.addr = STATS
            else:
                u = t.allowed[0]; keys = [("B", u + k) for k in range(t.nunits)]; t.addr = RB + u * UNIT
            assert free(keys, t.ie, t.lu), ("fixed overlap", t.name)
            take(keys, t.ie, t.lu)
        prev_ie = 0
        order = []
        for t in sorted(self.tiles, key=lambda t: (t.fu, self.tiles.index(t))):
            reg = "A" if t.kind == "kv" else "B"
            lo = t.fixed_ie if t.fixed_ie is not None else max(prev_ie, t.fu - t.lead, 0)
            ok = False
            for ie in range(lo, t.fu):
                for u in t.allowed:
                    if free([(reg, u)], ie, t.lu):
                        take([(reg, u)], ie, t.lu); t.ie = ie
                        t.addr = u * 2 * UNIT if reg == "A" else RB + u * UNIT
                        ok = True; break
                if ok: break
            assert ok, ("no LDS slot", t.name, t.fu, lo)
            if t.fixed_ie is None: prev_ie = t.ie
            order.append(t)
        self.order = order
        if self.cfg.get("verbose"):
            for t in order: print(f"  tile {t.name}: ie={t.ie} fu={t.fu} lu={t.lu} addr={t.addr}", file=sys.stderr)

    def emit(self):
        p = self.p
        alltiles = self.tiles + self.fixed
        for e, tasks in enumerate(self.epochs):
            if e > 0:
                done = []
                for t in alltiles:
                    if t.fu == e: done += t.prod
                    if t.lu == e - 1: done += t.reads
                if self.cfg.get("stamps") and e in self.cfg["stamps"]: self.stamp(f"e{e}")
                self.bar[e] = p(Op("s_barrier"), done=done, after=self.prev_after)
            else:
                self.bar[e] = None
            self.e = e
            groups = []
            for t in self.order:
                if t.ie == e: groups += [(t, g) for g in t.dma(t)]
            body = []
            for task in tasks: task.emit(self, body)
            nm = sum(1 for b in body if b[0].kind == "mfma")
            flat = [(t, o) for t, g in groups for o in g]
            nd = sum(1 for t, o in flat if o.kind == "dma")
            span = self.cfg.get("dma_span", 0.75)
            gap = max(self.cfg.get("dma_gap", 16), int(16 * nm * span / max(nd, 1)))
            prev = []
            for t, o in flat:
                o.gap = gap
                p(o, after=[self.bar[e]] if o.kind == "dma" else [], adj=self.cfg.get("dma_adj", -150))
                if o.kind == "dma":
                    t.prod.append(o); prev.append(o)
            for o, kw in body:
                p(o, **kw)
                if e == 0: prev.append(o)
            self.prev_after = prev

    def stamp(self, name):
        k = self.nstamp; self.nstamp += 1
        assert sSTAMP + k <= 101
        self.stamp_names.append(name)
        self.p(raw(f"s_memrealtime s[68:69]\ns_waitcnt lgkmcnt(0) ; DRAIN_LGKM\ns_mov_b32 s{sSTAMP+k}, s68", wr=["s68", "s69", f"s{sSTAMP+k}"]))

    def rd(self, body, tile, text, **kw):
        o = Op(text); tile.reads.append(o)
        body.append((o, dict(after=[self.bar[tile.fu]], **kw))); return o
    def wrt(self, body, tile, text, **kw):
        o = Op(text); tile.prod.append(o)
        body.append((o, dict(after=[self.bar[tile.ie]], **kw))); return o
    def op(self, body, text, **kw):
        o = Op(text); body.append((o, kw)); return o

class Task:
    def __init__(self, fn, tiles=()):
        self.fn, self.tiles = fn, tiles
    def emit(self, k, body): self.fn(k, body)

def dma_group(srdn, vregs, m0expr, soff_ops, soff_reg, flags):
    g = [Op(x) for x in soff_ops]
    g.append(Op(m0expr))
    fl = (" " + flags) if flags else ""
    for j, v in enumerate(vregs):
        off = f" offset:{1024*j}" if j else ""
        g.append(Op(f"buffer_load_dwordx4 v{v}, {srd(srdn)}, s{soff_reg} offen{off}{fl} lds"))
    return g

def kv_dma(srdn, goff, flags):
    def f(t):
        return [dma_group(srdn, vKV, f"s_add_u32 m0, s{sW3K}, {t.addr + h*UNIT}",
                          [f"s_mov_b32 s{sT0}, {goff + h*UNIT}"], sT0, flags) for h in range(2)]
    return f

class Gemm:
    def __init__(self, k, name, nks, nA, acc, ustride, wdma, bdma, bread, lead=2, first_zero=True, wall=(0, 1, 2, 3, 4), ball=(3, 4, 5, 6, 2)):
        self.k, self.name, self.nks, self.nA, self.acc, self.ustride = k, name, nks, nA, acc, ustride
        self.bread = bread
        self.first_zero = first_zero
        self.W, self.B = [], []
        for ks in range(nks):
            if ks % 2 == 0:
                t = Tile(f"{name}.B{ks//2}", "b", allowed=ball, dma=bdma(ks // 2), lead=lead); self.B.append(t); k.tiles.append(t)
            t = Tile(f"{name}.W{ks}", "w", allowed=wall, dma=wdma(ks), lead=lead); self.W.append(t); k.tiles.append(t)
    def step(self, ks):
        W, B = self.W[ks], self.B[ks // 2]
        def fn(k, body):
            bset = aB + 12 * (ks & 1)
            for i in range(3):
                v, imm = self.bread(ks, i)
                imm += B.addr - XB
                assert 0 <= imm < 65536
                k.rd(body, B, f"ds_read_b128 {ar(bset+4*i)}, v{v} offset:{imm}")
            for j in range(self.nA):
                a = aW + 4 * (k.wr % 6); k.wr += 1
                for u in range(2):
                    imm = W.addr - RB + self.ustride * u + 128 * (j >> 2)
                    assert 0 <= imm < 65536
                    k.rd(body, W, f"ds_read_b64_tr_b16 {ar(a+2*u,2)}, v{vW[j&3]} offset:{imm}")
                for i in range(3):
                    c = self.acc + 4 * (j * 3 + i)
                    cin = "0" if (ks == 0 and self.first_zero) else ar(c)
                    k.op(body, f"{MF} {ar(c)}, {ar(a)}, {ar(bset+4*i)}, {cin}")
        return Task(fn, [W, B])

def make_qproj(k, r, acc, lead, flags):
    def bdma(cc):
        def f(t):
            pre = []
            if cc > 0:
                pre = [f"s_add_u32 s{sXoff}, s{sXoff}, 128", f"s_cmp_eq_u32 s{sXoff}, 1280",
                       f"s_cselect_b32 s{sXoff}, 0, s{sXoff}"]
            pre.append(f"s_mul_i32 s{sWoff}, s{sXoff}, 6144")
            return [dma_group(sX, vXd, f"s_add_u32 m0, s{sW3K}, {t.addr}", pre, sXoff, flags[0])]
        return f
    def wdma(ks):
        def f(t):
            return [dma_group(sWq, vWd, f"s_add_u32 m0, s{sW3K}, {t.addr}",
                              [f"s_add_u32 s{sT0}, s{sWoff}, {393216*(ks&1) + 1536*r}"], sT0, flags[1])]
        return f
    def bread(ks, i): return (vXb if ks & 1 else vXa), 2048 * i
    return Gemm(k, f"Q{r}", 20, 6, acc, 1536, wdma, bdma, bread, lead=lead)

def make_oproj(k, name, nheads, acc, lead, flags, hmask, first_zero=True):
    def bdma(c):
        def f(t):
            pre = []
            if c % 3 == 0:
                if c > 0: pre += [f"s_add_u32 s{sHd}, s{sHd}, 1", f"s_and_b32 s{sHd}, s{sHd}, {hmask}"]
                pre += [f"s_mul_i32 s{sOo}, s{sHd}, {OBLK}", f"s_mul_i32 s{sWoo}, s{sHd}, {192*1280}"]
            pre.append(f"s_add_u32 s{sT0}, s{sOo}, {UNIT*(c%3)}")
            return [dma_group(sO, [vOd] * 3, f"s_add_u32 m0, s{sW3K}, {t.addr}", pre, sT0, flags[0])]
        return f
    def wdma(ks):
        def f(t):
            return [dma_group(sWo, vWd, f"s_add_u32 m0, s{sW3K}, {t.addr}",
                              [f"s_add_u32 s{sT0}, s{sWoo}, {32*1280*(ks%6)}"], sT0, flags[1])]
        return f
    def bread(ks, i): return vXa, 6144 * (ks & 1) + 1024 * i
    return Gemm(k, name, 6 * nheads, 5, acc, 6144, wdma, bdma, bread, lead=lead, first_zero=first_zero)

def t_qe_w(Qx, acc, tmp):
    def fn(k, body):
        for j in range(6):
            for i in range(3):
                c = acc + 4 * (j * 3 + i); v = tmp + 4 * (j * 3 + i)
                for r in range(4): k.op(body, f"v_accvgpr_read_b32 v{v+r}, a{c+r}")
                k.op(body, f"v_cvt_pk_bf16_f32 v{v}, v{v}, v{v+1}")
                k.op(body, f"v_cvt_pk_bf16_f32 v{v+1}, v{v+2}, v{v+3}")
                k.wrt(body, Qx, f"ds_write_b64 v{vQw}, {vr(v,2)} offset:{Qx.addr - RB + (i*6 + (j>>1))*1024 + 512*(j&1)}")
    return Task(fn)

def t_qe_r(Qx, q):
    def fn(k, body):
        for T in range(6):
            for i in range(3):
                k.rd(body, Qx, f"ds_read_b128 {ar(q + 4*(T*3+i))}, v{vQr} offset:{Qx.addr - RB + (i*6+T)*1024}")
    return Task(fn, [Qx])

def t_qk(Kt, t, q):
    def fn(k, body):
        for kt in range(2):
            for T in range(6):
                a = aKV + 4 * (k.kvr % 6); k.kvr += 1
                k.rd(body, Kt, f"ds_read_b128 {ar(a)}, v{vKb if T&1 else vKa} offset:{Kt.addr + 6144*kt + 128*(T>>1)}")
                for i in range(3):
                    s = Sreg(t, i, kt)
                    k.op(body, f"{MF} {vr(s)}, {ar(a)}, {ar(q + 4*(T*3+i))}, {'0' if T == 0 else vr(s)}")
            for i in range(3):
                s = Sreg(t, i, kt)
                if t == 0 and kt == 0:
                    k.op(body, f"v_max3_f32 v{vM+i}, v{s}, v{s+1}, v{s+2}")
                    k.op(body, f"v_max_f32 v{vM+i}, v{vM+i}, v{s+3}")
                else:
                    k.op(body, f"v_max3_f32 v{vM+i}, v{vM+i}, v{s}, v{s+1}")
                    k.op(body, f"v_max3_f32 v{vM+i}, v{vM+i}, v{s+2}, v{s+3}")
    return Task(fn, [Kt])

def t_mx_w(St):
    def fn(k, body):
        for sw in ("v_permlane32_swap_b32", "v_permlane16_swap_b32"):
            for i in range(3): k.op(body, f"v_mov_b32 v{vT+i}, v{vM+i}")
            for i in range(3): k.op(body, f"{sw} v{vT+i}, v{vM+i}")
            for i in range(3): k.op(body, f"v_max_f32 v{vM+i}, v{vT+i}, v{vM+i}")
        k.wrt(body, St, f"ds_write_b128 v{vSw}, {vr(vM)}")
    return Task(fn)

def t_mx_r(St):
    def fn(k, body):
        k.rd(body, St, f"ds_read_b128 {vr(vPM)}, v{vSr}")
        for i in range(3):
            k.op(body, f"v_max_f32 v{vMC+i}, v{vM+i}, v{vPM+i}")
            k.op(body, f"v_mul_f32 v{vMC+i}, s{sC}, v{vMC+i}")
    return Task(fn, [St])

def t_px_w(Pt, t):
    def fn(k, body):
        for i in range(3):
            s = Sreg(t, i)
            for h in range(4):
                for e in (2 * h, 2 * h + 1):
                    k.op(body, f"v_fma_f32 v{s+e}, v{s+e}, s{sC}, -v{vMC+i}")
                    k.op(body, f"v_exp_f32 v{s+e}, v{s+e}")
                k.op(body, f"v_cvt_pk_bf16_f32 v{s+h}, v{s+2*h}, v{s+2*h+1}")
            k.wrt(body, Pt, f"ds_write_b128 v{vPw}, {vr(s)} offset:{Pt.addr - (RB+5*UNIT) + 1024*i}")
        for i in range(3):
            c = aSUM + 4 * i
            k.op(body, f"{MF} {ar(c)}, {ar(aONE)}, {vr(Sreg(t,i))}, {'0' if t == 0 else ar(c)}")
    return Task(fn)

def t_pv(Vt, Pt, t, acc):
    def fn(k, body):
        pp = aPP + 12 * (t & 1)
        for i in range(3):
            k.rd(body, Pt, f"ds_read_b128 {ar(pp+4*i)}, v{vPr} offset:{Pt.addr - (RB+5*UNIT) + 1024*i}")
        for own in (1, 0):
            for j in range(6):
                a = aKV + 4 * (k.kvr % 6); k.kvr += 1
                va = (vVo if own else vVp)[j & 3]
                for u in range(2):
                    k.rd(body, Vt, f"ds_read_b64_tr_b16 {ar(a+2*u,2)}, v{va} offset:{Vt.addr + 6144*u + 128*(j>>2)}")
                for i in range(3):
                    c = acc + 4 * (j * 3 + i)
                    b = vr(Sreg(t, i)) if own else ar(pp + 4 * i)
                    k.op(body, f"{MF} {ar(c)}, {ar(a)}, {b}, {'0' if (t == 0 and own) else ar(c)}")
    return Task(fn, [Vt, Pt])

def t_sm_w(St):
    def fn(k, body):
        for i in range(3): k.op(body, f"v_accvgpr_read_b32 v{vM+i}, a{aSUM+4*i}")
        k.wrt(body, St, f"ds_write_b128 v{vSw}, {vr(vM)}")
    return Task(fn)

def t_sm_r(St):
    def fn(k, body):
        k.rd(body, St, f"ds_read_b128 {vr(vPM)}, v{vSr}")
        for i in range(3):
            k.op(body, f"v_add_f32 v{vT+4+i}, v{vM+i}, v{vPM+i}")
            k.op(body, f"v_rcp_f32 v{vT+4+i}, v{vT+4+i}")
    return Task(fn, [St])

def t_oe(acc, tmp, goff, flags):
    def fn(k, body):
        fl = (" " + flags) if flags else ""
        for jj in range(3):
            k.op(body, f"s_mov_b32 s{sST}, {goff + 6144*jj}")
            for i in range(3):
                v = tmp + 8 * (jj * 3 + i)
                for h in range(2):
                    c = acc + 4 * ((2 * jj + h) * 3 + i)
                    for r in range(4):
                        k.op(body, f"v_accvgpr_read_b32 v{v+4*h+r}, a{c+r}")
                        k.op(body, f"v_mul_f32 v{v+4*h+r}, v{vT+4+i}, v{v+4*h+r}")
                for h in range(4): k.op(body, f"v_cvt_pk_bf16_f32 v{v+h}, v{v+2*h}, v{v+2*h+1}")
                off = f" offset:{1024*i}" if i else ""
                k.op(body, f"buffer_store_dwordx4 {vr(v)}, v{vOst}, {srd(sO)}, s{sST} offen{off}{fl}")
    return Task(fn)

def prologue_common(L, nwg=256):
    e = L.append
    e(f"s_cmp_lt_u32 s2, {nwg}"); e("s_cbranch_scc1 1f"); e("s_endpgm"); e("1:")
    e("s_load_dwordx16 s[64:79], s[0:1], 0")
    e("s_load_dwordx8 s[80:87], s[0:1], 64")
    e("s_load_dwordx2 s[88:89], s[0:1], 96")
    e(f"v_lshrrev_b32 v{vT}, 6, v0")
    e(f"v_and_b32 v{vLane}, 63, v0")
    e(f"v_readfirstlane_b32 s{sW}, v{vT}")
    e(f"s_and_b32 s{sT0}, s2, 7"); e(f"s_lshr_b32 s{sT1}, s2, 3")
    e(f"s_lshr_b32 s{sBR}, s{sT0}, 2"); e(f"s_and_b32 s{sHG}, s{sT0}, 3")
    e(f"s_and_b32 s{sB}, s{sT1}, 7"); e(f"s_lshr_b32 s{sHH}, s{sT1}, 3")
    e(f"s_lshr_b32 s{sQH}, s{sW}, 1"); e(f"s_and_b32 s{sKH}, s{sW}, 1")
    e(f"s_mul_i32 s{sW3K}, s{sW}, 3072")
    e(f"v_lshlrev_b32 v{vL16}, 4, v{vLane}")
    e(f"s_mov_b32 s{sC}, {f32bits(CSCALE):#x}")

def mk_srd(L, n, lo_a, lo_b, off_reg, size):
    e = L.append
    e(f"s_cmp_eq_u32 s{sBR}, 0")
    e(f"s_cselect_b64 s[{n}:{n+1}], s[{lo_a}:{lo_a+1}], s[{lo_b}:{lo_b+1}]")
    e(f"s_add_u32 s{n}, s{n}, s{off_reg}"); e(f"s_addc_u32 s{n+1}, s{n+1}, 0")
    if isinstance(size, int): e(f"s_mov_b32 s{n+2}, {size}")
    else: e(f"s_sub_u32 s{n+2}, {size[0]}, s{off_reg}")
    e(f"s_mov_b32 s{n+3}, 0x00020000")

def dma_lane_regs(L, which):
    e = L.append
    l8, l7, ell, rho, jj, t = vT, vT + 1, vT + 2, vT + 3, vT + 4, vT + 5
    e(f"v_lshrrev_b32 v{l8}, 3, v{vLane}"); e(f"v_and_b32 v{l7}, 7, v{vLane}")
    if "x" in which:
        e(f"v_and_b32 v{t}, 6, v{l8}"); e(f"v_xor_b32 v{t}, v{t}, v{l7}"); e(f"v_lshlrev_b32 v{t}, 4, v{t}")
        e(f"v_mul_u32_u24 v{vXd[0]}, 1280, v{l8}")
        e(f"s_mul_i32 s{sT1}, s{sW}, {24*1280}")
        e(f"v_add3_u32 v{vXd[0]}, v{vXd[0]}, v{t}, s{sT1}")
        e(f"v_add_u32 v{vXd[1]}, {10240-1024}, v{vXd[0]}"); e(f"v_add_u32 v{vXd[2]}, {2*(10240-1024)}, v{vXd[0]}")
    for j in range(3):
        e(f"v_add_u32 v{ell}, {8*j}, v{l8}")
        e(f"v_mul_u32_u24 v{rho}, 43, v{ell}"); e(f"v_lshrrev_b32 v{rho}, 7, v{rho}")
        e(f"v_mul_u32_u24 v{jj}, 3, v{rho}"); e(f"v_sub_u32 v{jj}, v{ell}, v{jj}")
        if "wq" in which:
            e(f"s_lshl_b32 s{sT1}, s{sKH}, 2")
            e(f"v_and_b32 v{t}, 2, v{rho}"); e(f"v_or_b32 v{t}, s{sT1}, v{t}"); e(f"v_xor_b32 v{t}, v{t}, v{l7}")
            e(f"v_lshlrev_b32 v{t}, 4, v{t}"); e(f"v_lshl_add_u32 v{t}, v{jj}, 7, v{t}")
            e(f"v_mul_u32_u24 v{vWd[j]}, 12288, v{rho}")
            e(f"s_mul_i32 s{sT1}, s{sW}, {8*12288}"); e(f"s_sub_u32 s{sT1}, s{sT1}, {1024*j}")
            e(f"v_add3_u32 v{vWd[j]}, v{vWd[j]}, v{t}, s{sT1}")
        if "wo" in which or "kv" in which:
            e(f"v_and_b32 v{t}, 6, v{rho}"); e(f"v_xor_b32 v{t}, v{t}, v{l7}"); e(f"v_lshlrev_b32 v{t}, 4, v{t}")
        if "kv" in which:
            e(f"v_lshl_add_u32 v{vKV[j]}, v{l8}, 7, v{t}"); e(f"v_add_u32 v{vKV[j]}, s{sW3K}, v{vKV[j]}")
        if "wo" in which:
            e(f"v_lshl_add_u32 v{t}, v{jj}, 7, v{t}")
            e(f"v_mul_u32_u24 v{vWd[j]}, 1280, v{rho}")
            e(f"s_mul_i32 s{sT1}, s{sW}, {8*1280}"); e(f"s_sub_u32 s{sT1}, s{sT1}, {1024*j}")
            e(f"v_add3_u32 v{vWd[j]}, v{vWd[j]}, v{t}, s{sT1}")
    if "o" in which:
        e(f"v_add_u32 v{vOd}, s{sW3K}, v{vL16}")

def tr_regs(L, regs, rowmul, dt0_ops, extra_ops, base):
    e = L.append
    g, i16, bc, row, t = vT + 8, vT + 9, vT + 10, vT + 11, vT + 12
    e(f"v_lshrrev_b32 v{g}, 4, v{vLane}"); e(f"v_and_b32 v{i16}, 15, v{vLane}")
    e(f"v_and_b32 v{bc}, 1, v{g}"); e(f"v_lshlrev_b32 v{bc}, 1, v{bc}")
    e(f"v_lshrrev_b32 v{t}, 3, v{i16}"); e(f"v_or_b32 v{bc}, v{bc}, v{t}"); e(f"v_lshlrev_b32 v{bc}, 5, v{bc}")
    e(f"v_and_b32 v{t}, 3, v{i16}"); e(f"v_lshl_add_u32 v{bc}, v{t}, 3, v{bc}")
    e(f"v_lshrrev_b32 v{t}, 2, v{i16}"); e(f"v_lshl_add_u32 v{row}, v{g}, {rowmul.bit_length()-1}, v{t}")
    e(f"v_mul_u32_u24 v{row}, 384, v{row}")
    for x in dt0_ops + extra_ops: e(x)
    for j, r in enumerate(regs):
        e(f"s_add_u32 s{sT3}, s{sT1}, {j}"); e(f"s_and_b32 s{sT3}, s{sT3}, 3"); e(f"s_lshl_b32 s{sT3}, s{sT3}, 5")
        e(f"v_xor_b32 v{t}, s{sT3}, v{bc}")
        e(f"s_add_u32 s{sT3}, s{sT1}, {j}"); e(f"s_lshr_b32 s{sT3}, s{sT3}, 2"); e(f"s_lshl_b32 s{sT3}, s{sT3}, 7")
        e(f"s_add_u32 s{sT3}, s{sT3}, s{sT2}")
        if base: e(f"s_add_u32 s{sT3}, s{sT3}, {base}")
        e(f"v_add3_u32 v{r}, v{t}, v{row}, s{sT3}")

def attn_read_regs(L):
    e = L.append
    g, i16, t = vT + 8, vT + 9, vT + 12
    tr_regs(L, vVo, 4, [f"s_mul_i32 s{sT1}, s{sKH}, 6"], [f"s_mul_i32 s{sT2}, s{sKH}, {UNIT}"], 0)
    e(f"s_mul_i32 s{sT1}, s{sKH}, {(-2*UNIT) & 0xffffffff}"); e(f"s_add_u32 s{sT1}, s{sT1}, {UNIT}")
    for j in range(4): e(f"v_add_u32 v{vVp[j]}, s{sT1}, v{vVo[j]}")
    e(f"v_and_b32 v{t}, 6, v{i16}"); e(f"v_xor_b32 v{t}, v{t}, v{g}"); e(f"v_lshlrev_b32 v{t}, 4, v{t}")
    e(f"v_mul_u32_u24 v{vKa}, 384, v{i16}"); e(f"v_add3_u32 v{vKa}, v{vKa}, v{t}, s{sT2}")
    e(f"v_xor_b32 v{vKb}, 64, v{vKa}")
    e(f"s_add_u32 s{sT1}, s{sW3K}, {RB+5*UNIT}"); e(f"v_add_u32 v{vPw}, s{sT1}, v{vL16}")
    e(f"s_xor_b32 s{sT2}, s{sW}, 1"); e(f"s_mul_i32 s{sT1}, s{sT2}, 3072"); e(f"s_add_u32 s{sT1}, s{sT1}, {RB+5*UNIT}")
    e(f"v_add_u32 v{vPr}, s{sT1}, v{vL16}")
    e(f"s_lshl_b32 s{sT1}, s{sW}, 10"); e(f"s_add_u32 s{sT1}, s{sT1}, {STATS}"); e(f"v_add_u32 v{vSw}, s{sT1}, v{vL16}")
    e(f"v_xor_b32 v{vSr}, 1024, v{vSw}")
    e(f"v_lshrrev_b32 v{t}, 1, v{g}"); e(f"v_lshlrev_b32 v{t}, 8, v{t}"); e(f"v_lshl_add_u32 v{t}, v{i16}, 4, v{t}")
    e(f"v_and_b32 v{vQw}, 1, v{g}"); e(f"v_lshl_add_u32 v{vQw}, v{vQw}, 3, v{t}")
    e(f"s_mul_i32 s{sT1}, s{sQH}, {18*1024}"); e(f"s_add_u32 s{sT1}, s{sT1}, {RB}")
    e(f"v_add_u32 v{vQr}, s{sT1}, v{vL16}")
    e(f"s_mul_i32 s{sT2}, s{sKH}, {3*1024}"); e(f"s_add_u32 s{sT1}, s{sT1}, s{sT2}")
    e(f"v_add_u32 v{vQw}, s{sT1}, v{vQw}")
    e(f"s_mul_i32 s{sT1}, s{sKH}, {18*1024}"); e(f"s_mul_i32 s{sT2}, s{sQH}, {3*1024}"); e(f"s_add_u32 s{sT1}, s{sT1}, s{sT2}")
    e(f"v_add_u32 v{vOst}, s{sT1}, v{vL16}")
    e(f"v_mov_b32 v{t}, 0x3f803f80"); e(f"v_mov_b32 v{vM+3}, 0")
    for r in range(4): e(f"v_accvgpr_write_b32 a{aONE+r}, v{t}")

def qproj_read_regs(L):
    e = L.append
    g, i16, t = vT + 8, vT + 9, vT + 12
    tr_regs(L, vW, 8, [f"s_mul_i32 s{sT1}, s{sKH}, 6"], [f"s_mov_b32 s{sT2}, 0"], RB)
    e(f"v_and_b32 v{t}, 6, v{i16}"); e(f"v_xor_b32 v{t}, v{t}, v{g}"); e(f"v_lshlrev_b32 v{t}, 4, v{t}")
    e(f"v_lshl_add_u32 v{t}, v{i16}, 7, v{t}")
    e(f"s_mul_i32 s{sT1}, s{sQH}, 6144"); e(f"s_add_u32 s{sT1}, s{sT1}, {XB}")
    e(f"v_add_u32 v{vXa}, s{sT1}, v{t}"); e(f"v_xor_b32 v{vXb}, 64, v{vXa}")

def oproj_read_regs(L):
    e = L.append
    tr_regs(L, vW, 4, [f"s_and_b32 s{sT1}, s{sHH}, 1", f"s_lshl_b32 s{sT1}, s{sT1}, 1", f"s_mul_i32 s{sT2}, s{sKH}, 5",
                       f"s_add_u32 s{sT1}, s{sT1}, s{sT2}"], [f"s_mov_b32 s{sT2}, 0"], RB)
    e(f"s_mul_i32 s{sT1}, s{sQH}, 3072"); e(f"s_add_u32 s{sT1}, s{sT1}, {XB}")
    e(f"v_add_u32 v{vXa}, s{sT1}, v{vL16}")

def descriptor(name, vgpr=512, acc=256, sgpr=102):
    return [f".amdhsa_kernel {name}", f"  .amdhsa_next_free_vgpr {vgpr}", f"  .amdhsa_next_free_sgpr {sgpr}",
            f"  .amdhsa_accum_offset {acc}", "  .amdhsa_group_segment_fixed_size 0", "  .amdhsa_kernarg_size 104",
            "  .amdhsa_user_sgpr_count 2", "  .amdhsa_user_sgpr_kernarg_segment_ptr 1",
            "  .amdhsa_system_sgpr_workgroup_id_x 1", ".end_amdhsa_kernel"]

def stamp_dump(k, L, slot):
    e = L.append
    e("s_waitcnt vmcnt(0) lgkmcnt(0)")
    e("s_memrealtime s[68:69]"); e("s_load_dwordx2 s[4:5], s[0:1], 96"); e("s_waitcnt lgkmcnt(0)")
    n = k.nstamp; k.stamp_names.append("end")
    e(f"s_mov_b32 s{sSTAMP+n}, s68"); n += 1
    e(f"s_add_u32 s4, s4, {WS_T + (slot << 20)}"); e("s_addc_u32 s5, s5, 0"); e("s_mov_b32 s6, 0x100000"); e("s_mov_b32 s7, 0x00020000")
    e(f"s_lshl_b32 s3, s2, 2"); e(f"s_add_u32 s3, s3, s{sW}"); e("s_lshl_b32 s3, s3, 7")
    e("s_mov_b64 exec, 1")
    for i in range(n):
        e(f"v_mov_b32 v2, s{sSTAMP+i}")
        e(f"buffer_store_dword v2, off, s[4:7], s3 offset:{4*i}")
    e("s_waitcnt vmcnt(0)")

def as_ops(k, lines):
    for x in lines: k.p(x)

def gen_k1(cfg, name):
    k = Kern(cfg)
    L = []
    e = L.append
    prologue_common(L)
    if cfg.get("stamps"):
        e("s_memrealtime s[90:91]")
    dma_lane_regs(L, ("x", "wq", "kv"))
    e(f"s_lshl_b32 s{sT2}, s{sHG}, 3"); e(f"s_add_u32 s{sHd}, s{sT2}, s{sHH}")
    e(f"s_mul_i32 s{sXoff}, s{sHH}, {cfg.get('rot_h', 3)}"); e(f"s_mul_i32 s{sT2}, s{sB}, {cfg.get('rot_b', 1)}")
    e(f"s_add_u32 s{sXoff}, s{sXoff}, s{sT2}")
    e(f"s_sub_u32 s{sT2}, s{sXoff}, 10"); e(f"s_cmp_ge_u32 s{sXoff}, 10"); e(f"s_cselect_b32 s{sXoff}, s{sT2}, s{sXoff}")
    e(f"s_lshl_b32 s{sXoff}, s{sXoff}, 7")
    e("s_waitcnt lgkmcnt(0)")
    e(f"s_mul_i32 s{sT1}, s{sB}, 122880"); mk_srd(L, sX, 64, 74, sT1, 122880)
    e(f"s_mul_i32 s{sT1}, s{sHd}, 384"); mk_srd(L, sWq, 70, 80, sT1, (7864320,))
    e(f"s_lshl_b32 s{sT2}, s{sB}, 5"); e(f"s_add_u32 s{sT2}, s{sT2}, s{sHd}"); e(f"s_mul_i32 s{sT1}, s{sT2}, {HEADB}")
    mk_srd(L, sK, 66, 76, sT1, 5 * HEADB); mk_srd(L, sV, 68, 78, sT1, 5 * HEADB)
    e(f"s_lshl_b32 s{sT3}, s{sBR}, 8"); e(f"s_add_u32 s{sT2}, s{sT2}, s{sT3}"); e(f"s_mul_i32 s{sT1}, s{sT2}, {OBLK}")
    e(f"s_add_u32 s{sO}, s88, s{sT1}"); e(f"s_addc_u32 s{sO+1}, s89, 0"); e(f"s_mov_b32 s{sO+2}, {5*OBLK}"); e(f"s_mov_b32 s{sO+3}, 0x00020000")
    if cfg.get("stamps"):
        e(f"s_mov_b32 s{sSTAMP}, s90"); k.nstamp = 1; k.stamp_names.append("start")

    kvf = cfg.get("kv_flags", "nt"); qf = cfg.get("q_flags", ("", "")); of = cfg.get("o_flags", "")
    setup = []
    qproj_read_regs(setup); attn_read_regs(setup)
    E = k.epochs
    def ep(*tasks):
        E.append(list(tasks))
        for t in tasks:
            for tl in t.tiles: tl.use(len(E) - 1)
        return len(E) - 1
    def fixed(name, kind, n, unit):
        t = Tile(name, kind, nunits=n, allowed=[unit]); k.fixed.append(t); return t
    ep(Task(lambda kk, body: [kk.op(body, x) for x in setup]))
    inter = cfg.get("interleave", False)
    G = [make_qproj(k, 0, aX, cfg.get("lead_head", 3), qf), None]
    def kvtiles(r):
        Kt = [Tile(f"K{r}.{t}", "kv", allowed=(0, 1, 2), dma=kv_dma(sK, r*4*HEADB + t*2*UNIT, kvf), lead=99) for t in range(8)]
        Vt = [Tile(f"V{r}.{t}", "kv", allowed=(0, 1, 2), dma=kv_dma(sV, r*4*HEADB + t*2*UNIT, kvf), lead=99) for t in range(8)]
        k.tiles += Kt + Vt
        return Kt, Vt
    pend_oe = None
    Qx = None
    for r in range(2):
        qreg = aX if r == 0 else aY
        Kt, Vt = kvtiles(r)
        if r == 0 or not inter:
            if r == 1: G[1] = make_qproj(k, 1, aY, cfg.get("lead_head", 3), qf)
            e0 = len(E)
            for ks in range(20):
                tasks = [G[r].step(ks)]
                if ks == 0 and pend_oe: tasks.append(pend_oe); pend_oe = None
                if ks == 19:
                    Qx = fixed(f"Qx{r}", "q", 3, 0); Qx.ie = len(E)
                    tasks.append(t_qe_w(Qx, qreg, S0))
                ep(*tasks)
            for t, dk in enumerate(cfg.get("kpre", (2, 8, 14))): Kt[t].fixed_ie = e0 + dk
        ride = []
        if inter and r == 0:
            G[1] = make_qproj(k, 1, aY, 2, qf)
            ride = [G[1].step(ks) for ks in range(20)]
        plan = cfg.get("ride_plan", [1, 2, 1, 2, 1, 2, 1, 2, 2, 1, 1, 1, 1, 1, 1, 0, 0])
        def take(n):
            nonlocal ride
            x, ride = ride[:n], ride[n:]
            return x
        def eps(main, n, tail=()):
            rs = take(n)
            if len(rs) <= 1: return ep(*(list(main) + rs + list(tail)))
            ep(*(list(main) + rs[:1]))
            for x in rs[1:-1]: ep(x)
            return ep(*(rs[-1:] + list(tail)))
        St = fixed(f"mx{r}", "stats", 1, 0)
        for t in range(8):
            main = []
            if t == 0: main.append(t_qe_r(Qx, qreg))
            main.append(t_qk(Kt[t], t, qreg))
            if t == 0 and pend_oe: main.append(pend_oe); pend_oe = None
            if t == 7:
                St.ie = len(E); main.append(t_mx_w(St))
                rs = take(min(1, plan[7])); ep(*(main + rs))
            else:
                eps(main, plan[t])
        P = [fixed(f"P{r}.{t}", "p", 1, 5 + (t & 1)) for t in range(8)]
        rs = take(plan[8] + max(0, plan[7] - 1))
        P[0].ie = len(E)
        if len(rs) <= 1:
            ep(*([t_mx_r(St)] + rs + [t_px_w(P[0], 0)]))
        else:
            ep(t_mx_r(St), rs[0])
            for x in rs[1:-1]: ep(x)
            ep(rs[-1], t_px_w(P[0], 0))
        St2 = fixed(f"sm{r}", "stats", 1, 0)
        oacc = qreg
        for t in range(8):
            main = [t_pv(Vt[t], P[t], t, oacc)]
            rs = take(plan[9 + t]); assert len(rs) <= 1
            main += rs
            if t < 7:
                P[t + 1].ie = len(E); main.append(t_px_w(P[t + 1], t + 1))
            if t == 6:
                St2.ie = len(E); main.append(t_sm_w(St2))
            if inter and r == 0 and t == cfg.get("qe_at", 6):
                assert not ride
                Qx = fixed("Qx1", "q", 3, 0); Qx.ie = len(E)
                main.append(t_qe_w(Qx, aY, S0))
            if t == 7:
                main.append(t_sm_r(St2))
                oe = t_oe(oacc, Sreg(4, 0), r * 4 * OBLK, of)
                if r == 0: pend_oe = oe
                else: main.append(oe)
            ep(*main)
    k.plan(); k.emit()
    k.p.schedule(dma_gap=cfg.get("dma_gap", 24))
    L = ["    " + x if not x.endswith(":") else x for x in L]
    L += k.p.finalize(comments=cfg.get("comments", False))
    T = []
    if cfg.get("stamps"): stamp_dump(k, T, 0)
    T.append("s_endpgm")
    L += ["    " + x for x in T]
    print(name, k.p.stats, "epochs", len(E), file=sys.stderr)
    return L, k

def gen_k2(cfg, name):
    k = Kern(cfg)
    L = []
    e = L.append
    prologue_common(L)
    if cfg.get("stamps"): e("s_memrealtime s[90:91]")
    dma_lane_regs(L, ("wo", "o"))
    e(f"s_mov_b32 s{sHd}, s{sB}")
    e("s_waitcnt lgkmcnt(0)")
    e(f"s_mul_i32 s{sT1}, s{sHG}, {8*192*1280}"); e(f"s_mul_i32 s{sT2}, s{sHH}, 320"); e(f"s_add_u32 s{sT1}, s{sT1}, s{sT2}")
    e(f"s_and_b32 s{sT2}, s{sHH}, 1"); e(f"s_lshl_b32 s{sT2}, s{sT2}, 6"); e(f"s_sub_u32 s{sT1}, s{sT1}, s{sT2}")
    mk_srd(L, sWo, 72, 82, sT1, (7864320,))
    e(f"s_lshl_b32 s{sT2}, s{sBR}, 3"); e(f"s_add_u32 s{sT2}, s{sT2}, s{sB}"); e(f"s_lshl_b32 s{sT2}, s{sT2}, 2")
    e(f"s_add_u32 s{sT3}, s{sT2}, s{sHG}"); e(f"s_mul_i32 s{sT1}, s{sT3}, {8*OBLK}")
    e(f"s_add_u32 s{sO}, s88, s{sT1}"); e(f"s_addc_u32 s{sO+1}, s89, 0"); e(f"s_mov_b32 s{sO+2}, {8*OBLK}"); e(f"s_mov_b32 s{sO+3}, 0x00020000")
    e(f"s_add_u32 s{sT3}, s{sT2}, s{sHH}"); e(f"s_lshl_b32 s{sT3}, s{sT3}, 2"); e(f"s_add_u32 s{sT3}, s{sT3}, s{sHG}")
    e(f"s_mul_i32 s{sT1}, s{sT3}, 61440"); e(f"s_add_u32 s{sT1}, s{sT1}, {WS_P}")
    e(f"s_add_u32 s{sP}, s88, s{sT1}"); e(f"s_addc_u32 s{sP+1}, s89, 0"); e(f"s_mov_b32 s{sP+2}, 61440"); e(f"s_mov_b32 s{sP+3}, 0x00020000")
    if cfg.get("stamps"):
        e(f"s_mov_b32 s{sSTAMP}, s90"); k.nstamp = 1; k.stamp_names.append("start")
    setup = []
    oproj_read_regs(setup)
    setup += [f"s_mul_i32 s{sT1}, s{sW}, 15360", f"v_add_u32 v{vOst}, s{sT1}, v{vL16}"]
    E = k.epochs
    def ep(*tasks):
        E.append(list(tasks))
        for t in tasks:
            for tl in t.tiles: tl.use(len(E) - 1)
    ep(Task(lambda kk, body: [kk.op(body, x) for x in setup]))
    G = make_oproj(k, "O", 8, aX, cfg.get("lead_o", 3), cfg.get("o2_flags", ("", "")), 7)
    def st(kk, body):
        for n in range(15):
            if n % 4 == 0: kk.op(body, f"s_mov_b32 s{sST}, {4096*(n//4)}")
            off = f" offset:{1024*(n%4)}" if n % 4 else ""
            kk.op(body, f"buffer_store_dwordx4 {ar(aX+4*n)}, v{vOst}, {srd(sP)}, s{sST} offen{off}")
    for ks in range(48):
        if ks == 47: ep(G.step(ks), Task(st))
        else: ep(G.step(ks))
    k.plan(); k.emit()
    k.p.schedule(dma_gap=cfg.get("dma_gap", 24))
    L = ["    " + x if not x.endswith(":") else x for x in L]
    L += k.p.finalize(comments=cfg.get("comments", False))
    T = []
    if cfg.get("stamps"): stamp_dump(k, T, 1)
    T.append("s_endpgm")
    L += ["    " + x for x in T]
    print(name, k.p.stats, "epochs", len(E), file=sys.stderr)
    return L, k

def gen_k3(cfg, name):
    L = []
    e = L.append
    e("s_cmp_lt_u32 s2, 960"); e("s_cbranch_scc1 1f"); e("s_endpgm"); e("1:")
    e("s_load_dwordx2 s[4:5], s[0:1], 96"); e("s_load_dwordx2 s[12:13], s[0:1], 80")
    e("v_lshrrev_b32 v1, 6, v0"); e("v_and_b32 v2, 63, v0"); e("v_readfirstlane_b32 s3, v1")
    e("s_lshl_b32 s16, s2, 2"); e("s_add_u32 s16, s16, s3")
    e(f"s_mul_hi_u32 s17, s16, {-(-(1<<32)//60)}")
    e("s_mul_i32 s18, s17, 60"); e("s_sub_u32 s18, s16, s18")
    e(f"s_mul_hi_u32 s19, s18, {-(-(1<<32)//15)}")
    e("s_mul_i32 s20, s19, 15"); e("s_sub_u32 s20, s18, s20")
    e(f"s_mul_hi_u32 s21, s20, {-(-(1<<32)//3)}")
    e("s_mul_i32 s22, s21, 3"); e("s_sub_u32 s22, s20, s22")
    e(f"s_mul_i32 s23, s17, {4*61440}"); e("s_lshl_b32 s24, s18, 10"); e("s_add_u32 s23, s23, s24"); e(f"s_add_u32 s23, s23, {WS_P}")
    e("v_lshlrev_b32 v3, 4, v2")
    e("s_waitcnt lgkmcnt(0)")
    e("s_add_u32 s8, s4, s23"); e("s_addc_u32 s9, s5, 0"); e(f"s_mov_b32 s10, {3*61440+1024}"); e("s_mov_b32 s11, 0x00020000")
    for h in range(4):
        e(f"s_mov_b32 s25, {61440*h}")
        e(f"buffer_load_dwordx4 v[{8+4*h}:{11+4*h}], v3, s[8:11], s25 offen")
    e("s_lshr_b32 s26, s17, 2"); e("s_and_b32 s27, s26, 7"); e("s_lshr_b32 s26, s26, 3"); e("s_and_b32 s28, s17, 3")
    e("s_mul_i32 s27, s27, 96"); e("s_lshr_b32 s29, s19, 1"); e("s_mul_i32 s29, s29, 48"); e("s_add_u32 s27, s27, s29")
    e("s_lshl_b32 s29, s22, 4"); e("s_add_u32 s27, s27, s29"); e("s_mul_i32 s27, s27, 2560")
    e("s_mul_i32 s26, s26, 1280"); e("s_mul_i32 s28, s28, 320"); e("s_and_b32 s29, s19, 1"); e("s_mul_i32 s29, s29, 160")
    e("s_add_u32 s27, s27, s26"); e("s_add_u32 s27, s27, s28"); e("s_add_u32 s27, s27, s29"); e("s_lshl_b32 s29, s21, 5"); e("s_add_u32 s27, s27, s29")
    e("v_and_b32 v4, 15, v2"); e("v_mul_u32_u24 v4, 2560, v4"); e("v_lshrrev_b32 v5, 4, v2"); e("v_lshl_add_u32 v4, v5, 3, v4")
    e("s_mov_b32 s14, 1966080"); e("s_mov_b32 s15, 0x00020000")
    e("s_waitcnt vmcnt(2)")
    for r in range(4): e(f"v_add_f32 v{8+r}, v{8+r}, v{12+r}")
    e("s_waitcnt vmcnt(0)")
    for r in range(4): e(f"v_add_f32 v{16+r}, v{16+r}, v{20+r}")
    for r in range(4): e(f"v_add_f32 v{8+r}, v{8+r}, v{16+r}")
    e("v_cvt_pk_bf16_f32 v8, v8, v9"); e("v_cvt_pk_bf16_f32 v9, v10, v11")
    e("buffer_store_dwordx2 v[8:9], v4, s[12:15], s27 offen")
    e("s_endpgm")
    return ["    " + x if not x.endswith(":") else x for x in L]

HEADER = open("cdna_kernels/" + NAME + ".s.ref").read().split("; Override launch")[0] if True else ""

def gen_file(cfg):
    k1n, k2n, k3n = NAME + "_kernel", "oproj_kernel", "reduce_kernel"
    out = [HEADER.rstrip()]
    out.append(f"; @launch kernel={k1n} grid=(256,1,1) block=(256,1,1) lds={LDS_BYTES}")
    out.append(f"; @launch kernel={k2n} grid=(256,1,1) block=(256,1,1) lds={LDS_BYTES}")
    out.append(f"; @launch kernel={k3n} grid=(960,1,1) block=(256,1,1) lds=0")
    out.append('.amdgcn_target "amdgcn-amd-amdhsa--gfx950"'); out.append(".text")
    info = {}
    for n, g in ((k1n, gen_k1), (k2n, gen_k2), (k3n, gen_k3)):
        out += [f".globl {n}", ".p2align 8", f".type {n},@function", f"{n}:"]
        c = dict(cfg)
        if n == k2n and cfg.get("stamps"): c["stamps"] = cfg.get("stamps2", [1, 12, 24, 36, 48])
        r = g(c, n)
        if isinstance(r, tuple):
            out += r[0]; info[n] = r[1].stamp_names
        else: out += r
    out += ['.section .rodata,"a"', ".p2align 6"] + descriptor(k1n) + [".p2align 6"] + descriptor(k2n)
    out += [".p2align 6"] + descriptor(k3n, vgpr=24, acc=24, sgpr=32)
    return "\n".join(out) + "\n", info

if __name__ == "__main__":
    cfg = eval(sys.argv[2]) if len(sys.argv) > 2 else {}
    txt, info = gen_file(cfg)
    open(sys.argv[1], "w").write(txt)
    if cfg.get("stamps"): print(info)
```
